```python
import torch

def _softmax(x, axis=-1):
    return torch.softmax(x, dim=axis)
def _gelu(x):
    return torch.nn.functional.gelu(x, approximate="tanh")
def _silu(x):
    return torch.nn.functional.silu(x)
def _sigmoid(x):
    return torch.sigmoid(x)
def _layernorm(x, axis=-1, eps=1e-5):
    m = x.mean(dim=axis, keepdim=True)
    v = x.var(dim=axis, keepdim=True, unbiased=False)
    return (x - m) / torch.sqrt(v + eps)
def _scatter_add(tgt, idx, src, axis=0):
    return tgt.clone().index_add_(axis, idx, src)
def _segment_sum(src, seg, n):
    out = torch.zeros((n,) + src.shape[1:], dtype=src.dtype)
    return out.index_add_(0, seg, src)
def _pad(x, pw):
    flat = tuple(v for pair in reversed(pw) for v in pair)
    return torch.nn.functional.pad(x, flat)

kernel_name = 'interleave_layers__gqa_block_cached__gqa_block_cached__decode'

def setup_inputs():

    _w = (lambda a: (lambda t: t.to(torch.bfloat16) if t.is_floating_point() else t)(torch.as_tensor(a)))
    def _A_setup():
        B, Sq, D = 8, 1, 512
        Hq, Hkv, Sk, Dh = 32, 8, 4096, 128
        assert Hq % Hkv == 0, (Hq, Hkv)
        return {
            "x": _w((lambda *s: torch.randn(*s, dtype=torch.bfloat16) * 0.1)(B, Sq, D)),
            "k_cache": _w((lambda *s: torch.randn(*s, dtype=torch.bfloat16) * 0.8)(B, Hkv, Sk, Dh)),
            "v_cache": _w((lambda *s: torch.randn(*s, dtype=torch.bfloat16) * 3.2)(B, Hkv, Sk, Dh)),
            "wq": _w((lambda *s: torch.randn(*s, dtype=torch.bfloat16) * 0.8)(D, Hq * Dh) * (D ** -0.5)),
            "wo": _w((lambda *s: torch.randn(*s, dtype=torch.bfloat16) * 3.2)(Hq * Dh, D) * ((Hq * Dh) ** -0.5)),
        }
    _A_in = _A_setup()

    def _B_setup():
        B, Sq, D = 8, 1, 512
        Hq, Hkv, Sk, Dh = 32, 8, 4096, 128
        assert Hq % Hkv == 0, (Hq, Hkv)
        return {
            "x": _w((lambda *s: torch.randn(*s, dtype=torch.bfloat16) * 0.1)(B, Sq, D)),
            "k_cache": _w((lambda *s: torch.randn(*s, dtype=torch.bfloat16) * 1.6)(B, Hkv, Sk, Dh)),
            "v_cache": _w((lambda *s: torch.randn(*s, dtype=torch.bfloat16) * 1.6)(B, Hkv, Sk, Dh)),
            "wq": _w((lambda *s: torch.randn(*s, dtype=torch.bfloat16) * 1.6)(D, Hq * Dh) * (D ** -0.5)),
            "wo": _w((lambda *s: torch.randn(*s, dtype=torch.bfloat16) * 1.6)(Hq * Dh, D) * ((Hq * Dh) ** -0.5)),
        }
    _B_in = _B_setup()

    return {
        "A_x": _A_in["x"],
        "A_k_cache": _A_in["k_cache"],
        "A_v_cache": _A_in["v_cache"],
        "A_wq": _A_in["wq"],
        "A_wo": _A_in["wo"],
        "B_x": _B_in["x"],
        "B_k_cache": _B_in["k_cache"],
        "B_v_cache": _B_in["v_cache"],
        "B_wq": _B_in["wq"],
        "B_wo": _B_in["wo"],
    }

def reference(A_x, A_k_cache, A_v_cache, A_wq, A_wo, B_x, B_k_cache, B_v_cache, B_wq, B_wo):
    def _A_ref(x, k_cache, v_cache, wq, wo):
        B, Sq, D = x.shape
        Hq, Dh = 32, 128
        Hkv = k_cache.shape[1]
        rep = Hq // Hkv
        q = (lambda x, *d: x.permute(*d))((x @ wq).reshape(B, Sq, Hq, Dh), 0, 2, 1, 3)
        k = (lambda x, n, axis: torch.repeat_interleave(x, n, dim=axis))(k_cache, rep, axis=1)
        v = (lambda x, n, axis: torch.repeat_interleave(x, n, dim=axis))(v_cache, rep, axis=1)
        scores = torch.einsum("bhqd,bhkd->bhqk", q, k) * (Dh ** -0.5)
        p = _softmax(scores, axis=-1)
        o = torch.einsum("bhqk,bhkd->bhqd", p, v)
        return (lambda x, *d: x.permute(*d))(o, 0, 2, 1, 3).reshape(B, Sq, Hq * Dh) @ wo

    def _B_ref(x, k_cache, v_cache, wq, wo):
        B, Sq, D = x.shape
        Hq, Dh = 32, 128
        Hkv = k_cache.shape[1]
        rep = Hq // Hkv
        q = (lambda x, *d: x.permute(*d))((x @ wq).reshape(B, Sq, Hq, Dh), 0, 2, 1, 3)
        k = (lambda x, n, axis: torch.repeat_interleave(x, n, dim=axis))(k_cache, rep, axis=1)
        v = (lambda x, n, axis: torch.repeat_interleave(x, n, dim=axis))(v_cache, rep, axis=1)
        scores = torch.einsum("bhqd,bhkd->bhqk", q, k) * (Dh ** -0.5)
        p = _softmax(scores, axis=-1)
        o = torch.einsum("bhqk,bhkd->bhqd", p, v)
        return (lambda x, *d: x.permute(*d))(o, 0, 2, 1, 3).reshape(B, Sq, Hq * Dh) @ wo

    x = A_x
    x = x + _A_ref(_layernorm(x, axis=-1), A_k_cache, A_v_cache, A_wq, A_wo)
    x = x + _B_ref(_layernorm(x, axis=-1), B_k_cache, B_v_cache, B_wq, B_wo)
    x = x + _A_ref(_layernorm(x, axis=-1), A_k_cache, A_v_cache, A_wq, A_wo)
    x = x + _B_ref(_layernorm(x, axis=-1), B_k_cache, B_v_cache, B_wq, B_wo)
    return x
```

```python
import re

REG = re.compile(r'^(-|\|)?([vas])(?:\[(\d+):(\d+)\]|(\d+))\|?$')
def regs_of(tok):
    tok = tok.strip()
    tok = re.sub(r'^(neg|abs)\((.*)\)$', r'\2', tok)
    if tok in ('vcc',): return [('s', 106), ('s', 107)]
    if tok == 'vcc_lo': return [('s', 106)]
    if tok == 'vcc_hi': return [('s', 107)]
    if tok == 'exec': return [('s', 126), ('s', 127)]
    if tok == 'm0': return [('s', 124)]
    m = REG.match(tok)
    if not m: return []
    f = m.group(2)
    if m.group(5) is not None: return [(f, int(m.group(5)))]
    return [(f, i) for i in range(int(m.group(3)), int(m.group(4)) + 1)]

TRANS = ('v_exp_f32', 'v_log_f32', 'v_rcp_f32', 'v_rsq_f32', 'v_sqrt_f32', 'v_sin_f32', 'v_cos_f32')

class Ins:
    __slots__ = ('text', 'op', 'w', 'r', 'cls', 'dpp', 'srcC', 'lds', 'wide_data', 'states')
    def __init__(self, text):
        self.text = text
        t = text.split(';')[0].strip()
        self.op = t.split()[0]
        rest = t[len(self.op):].strip()
        ops = []
        depth = 0; cur = ''
        for ch in rest + ',':
            if ch in '[(': depth += 1
            if ch in '])': depth -= 1
            if ch == ',' and depth == 0:
                ops.append(cur.strip()); cur = ''
            else: cur += ch
        ops = [o for o in ops if o]
        mods = []
        if ops:
            parts = ops[-1].split()
            ops[-1] = parts[0]; mods = parts[1:]
        op = self.op
        self.dpp = op.endswith('_dpp') or any(m.startswith(('row_', 'quad_perm')) for m in mods)
        self.lds = 'lds' in mods
        self.srcC = []; self.wide_data = []
        self.states = 1
        W = []; R = []
        rr = lambda xs: sum((regs_of(x) for x in xs), [])
        if op == 's_nop':
            self.cls = 'nop'; self.states = int(ops[0], 0) + 1
        elif op.startswith('v_mfma'):
            self.cls = 'mfma'; W = regs_of(ops[0]); R = rr(ops[1:3]); self.srcC = regs_of(ops[3])
        elif op.startswith(('buffer_load', 'global_load')):
            self.cls = 'vmem'
            if self.lds: R = rr(ops) + [('s', 124)]
            else: W = regs_of(ops[0]); R = rr(ops[1:])
        elif op.startswith(('buffer_store', 'buffer_atomic')):
            self.cls = 'vmem'; R = rr(ops)
            if op.endswith(('x3', 'x4')): self.wide_data = regs_of(ops[0])
        elif op.startswith('global_store'):
            self.cls = 'vmem'; R = rr(ops)
            if op.endswith(('x3', 'x4')): self.wide_data = regs_of(ops[1])
        elif op.startswith('ds_read') or op.startswith(('ds_bpermute', 'ds_swizzle')):
            self.cls = 'ds'; W = regs_of(ops[0]); R = rr(ops[1:])
        elif op.startswith('ds_'):
            self.cls = 'ds'; R = rr(ops)
        elif op.startswith('v_'):
            self.cls = 'trans' if op.replace('_e32', '').replace('_e64', '') in TRANS else 'valu'
            if op.startswith('v_permlane') and 'swap' in op:
                self.cls = 'permlane'; W = rr(ops[:2]); R = rr(ops[:2])
            elif op.startswith(('v_readlane', 'v_readfirstlane')):
                self.cls = 'readlane'; W = regs_of(ops[0]); R = rr(ops[1:])
            elif op.startswith(('v_add_co', 'v_addc_co', 'v_sub_co')):
                W = rr(ops[:2]); R = rr(ops[2:])
            else:
                W = regs_of(ops[0]); R = rr(ops[1:])
                if op.startswith(('v_fmac', 'v_mac')) or self.dpp: R = R + W
                if op.startswith('v_cndmask') and len(ops) == 3: R = R + regs_of('vcc')
        elif op.startswith('s_'):
            self.cls = 'salu'
            if op.startswith(('s_cmp', 's_cbranch', 's_branch', 's_waitcnt', 's_barrier', 's_sleep', 's_endpgm', 's_setprio', 's_bitcmp')):
                R = rr(ops)
            else:
                W = regs_of(ops[0]) if ops else []; R = rr(ops[1:])
                if 'saveexec' in op: W = W + regs_of('exec')
        else:
            raise ValueError('unknown op ' + text)
        self.w = set(W); self.r = set(R); self.srcC = set(self.srcC); self.wide_data = set(self.wide_data)

VALUISH = ('valu', 'trans', 'permlane', 'readlane')
def need_states(p, c):
    n = 0
    pw = p.w
    if p.cls in VALUISH:
        vw = {x for x in pw if x[0] in 'va'}
        sw = {x for x in pw if x[0] == 's'}
        if vw:
            if c.dpp and c.cls in VALUISH and vw & c.r: n = max(n, 2)
            if c.cls == 'mfma' and vw & (c.r | c.srcC): n = max(n, 2)
            if c.cls == 'permlane' and vw & c.r: n = max(n, 2)
            if c.cls == 'readlane' and vw & c.r: n = max(n, 1)
            if p.cls == 'trans' and c.cls in VALUISH + ('mfma',) and vw & (c.r | c.srcC): n = max(n, 1 if c.cls != 'mfma' else 2)
        if sw:
            if c.cls == 'vmem' and sw & c.r: n = max(n, 5)
            if c.cls in VALUISH and sw & c.r: n = max(n, 4 if c.cls == 'readlane' else 2)
            if c.cls == 'salu' and sw & c.r: n = max(n, 1)
    if p.cls == 'mfma':
        if c.cls == 'mfma':
            if pw & c.r: n = max(n, 8)
            if pw & c.srcC and pw != c.srcC: n = max(n, 6)
            if pw & c.w and not (pw & c.srcC): n = max(n, 8)
        elif c.cls in VALUISH or c.cls in ('vmem', 'ds'):
            if pw & (c.r | c.w): n = max(n, 8)
        if c.cls in VALUISH and p.srcC & c.w: n = max(n, 3)
    if p.cls == 'salu' and ('s', 124) in pw and c.cls == 'vmem' and c.lds: n = max(n, 1)
    if p.wide_data and (p.wide_data & c.w): n = max(n, 2)
    return n

class Asm:
    def __init__(self):
        self.items = []
        self.vmq = []
        self.lgq = []
        self.nlabel = 0
        self.maxvm = 0
    def raw(self, s): self.items.append(s)
    def c(self, s): self.items.append('; ' + s)
    def label(self, name): self.items.append(name + ':')
    def newlabel(self, p='L'):
        self.nlabel += 1; return f'{p}_{self.nlabel}'
    def I(self, s):
        for line in s.strip().split('\n'):
            line = line.strip()
            if line: self.items.append(Ins(line))
    def vm(self, s, tag=None):
        if len(self.vmq) >= 60: self.wait_vm_n(59)
        self.I(s); self.vmq.append(tag); self.maxvm = max(self.maxvm, len(self.vmq))
    def vm_uncounted(self, s): self.I(s)
    def wait_vm_n(self, n):
        if len(self.vmq) > n:
            self.I(f's_waitcnt vmcnt({n})'); self.vmq = self.vmq[len(self.vmq) - n:] if n else []
    def wait_vm(self, tag):
        idx = [i for i, t in enumerate(self.vmq) if t == tag]
        if idx: self.wait_vm_n(len(self.vmq) - 1 - idx[-1])
    def wait_vm0(self):
        self.I('s_waitcnt vmcnt(0)'); self.vmq = []
    def ds(self, s, tag=None):
        self.I(s); self.lgq.append(tag)
    def wait_lg_n(self, n):
        if len(self.lgq) > n:
            n = min(n, 15)
            self.I(f's_waitcnt lgkmcnt({n})'); self.lgq = self.lgq[len(self.lgq) - n:] if n else []
    def wait_lg(self, tag):
        idx = [i for i, t in enumerate(self.lgq) if t == tag]
        if idx: self.wait_lg_n(len(self.lgq) - 1 - idx[-1])
    def wait_lg0(self):
        self.I('s_waitcnt lgkmcnt(0)'); self.lgq = []
    def barrier(self):
        self.wait_lg_n(0); self.I('s_barrier')
    def text(self):
        out = []; hist = []
        npad = 0
        for it in self.items:
            if isinstance(it, str):
                out.append(it); continue
            need = 0; dist = 0
            for p in reversed(hist):
                n = need_states(p, it)
                if n > dist: need = max(need, n - dist)
                dist += p.states
                if dist >= 10: break
            while need > 0:
                k = min(need, 16)
                nop = Ins(f's_nop {k-1}'); out.append('    ' + nop.text); hist.append(nop); need -= k; npad += 1
            out.append('    ' + it.text); hist.append(it)
            if len(hist) > 16: hist = hist[-16:]
        self.npad = npad
        return '\n'.join(out) + '\n'
```

```python
import sys, argparse
from asmlib import Asm
NAME = "interleave_layers__gqa_block_cached__gqa_block_cached__decode"

MB_O  = 0
MB_OS = 0x100000
MB_Y  = 0x108000
QBLK  = 4736
QLAY  = 256 * QBLK
MB_Q  = {1: 0x188000, 2: 0x188000 + QLAY, 3: 0x188000 + 2 * QLAY, 0: 0x500000}
CLEAR_PER_WAVE = 5
STAMP_OFF = 0x800000
WS_SIZE = 0x1000000

NL = 36
L_OC = 0
L_Y = L_OC + 8192
L_Q = L_Y + 2304
L_W1 = L_Q + 1024
L_MX = L_W1 + 4096
L_SLOT = 16384
assert L_MX + 128 <= L_SLOT
LDS_BYTES = L_SLOT + 4 * NL * 1024
assert LDS_BYTES <= 163840

sW, sHKV, sIDX, sB, sS = 's3', 's4', 's5', 's6', 's7'
SRD = {'KA': 8, 'VA': 12, 'KB': 16, 'VB': 20, 'WS': 24, 'WQA': 28, 'WOA': 32, 'WQB': 36, 'WOB': 40, 'X': 44}
sCH = 48
sT0, sT1, sT2, sT3 = 's64', 's65', 's66', 's67'
sSELLO, sSELHI, sSCALE, sLDSW = 's68', 's69', 's70', 's71'
sWQOFF, sWOOFF, sRETRY, sXG = 's72', 's73', 's74', 's75'
sM0, sM1 = 's[76:77]', 's[78:79]'
sPTR = 80
sSTAMP = 82
def srd(n): return f's[{SRD[n]}:{SRD[n]+3}]'

vLANE, vK, vV, vL, vXOLD, vNM, vRL, vT = 'v0', 'v1', 'v2', 'v3', 'v4', 'v5', 'v6', 'v7'
QA = 8; S0 = 12; O0 = 28; CS = 60; TM = 64; VSLOT0 = 72
NV = (256 - VSLOT0) // 4; NA = 64
def v(i, n=1): return f'v{i}' if n == 1 else f'v[{i}:{i+n-1}]'

SCALE = (128 ** -0.5) * 1.4426950408889634
import struct
def f32(x): return '0x%08x' % struct.unpack('<I', struct.pack('<f', x))[0]

class Gen:
    def __init__(self, o):
        self.o = o
        self.a = Asm()
        self.free = {'v': list(range(NV)), 'a': list(range(NA)), 'l': list(range(NL))}
        self.loc = {}
        self.stream = []
        self.nstamp = 0
        self.wslots = {}
        self.log = []
    def slotreg(self, sl):
        k, i = sl
        return f'v[{VSLOT0+4*i}:{VSLOT0+4*i+3}]' if k == 'v' else f'a[{4*i}:{4*i+3}]'
    def slotreg1(self, sl, r):
        k, i = sl
        return f'v{VSLOT0+4*i+r}' if k == 'v' else f'a{4*i+r}'
    def alloc(self, prefs):
        for k in prefs:
            if self.free[k]: return (k, self.free[k].pop(0))
        return None
    def release(self, tile):
        k, i = self.loc.pop(tile); self.free[k].append(i)
    def inflight(self): return sum(1 for t in self.a.vmq if isinstance(t, tuple) and t[0] == 'tile')
    def issue(self, item, sl):
        a = self.a
        mat, kind, t, prefs, pol = item
        tile = (mat, kind, t)
        self.loc[tile] = sl
        voff = vK if kind == 'K' else vV
        so = f's{sCH + (t >> 2)}'; imm = (t & 3) * 1024
        if sl[0] == 'l':
            a.I(f's_add_u32 m0, {sLDSW}, {sl[1]*1024 - imm + 4096}')
            a.vm(f'buffer_load_dwordx4 {voff}, {srd(kind+mat)}, {so} offen offset:{imm} {pol} lds', ('tile', tile))
        else:
            a.vm(f'buffer_load_dwordx4 {self.slotreg(sl)}, {voff}, {srd(kind+mat)}, {so} offen offset:{imm} {pol}', ('tile', tile))
    def pump(self, depth=None, maxn=999, reserve_v=0):
        depth = self.o.depth if depth is None else depth
        n = 0
        while self.stream and self.inflight() < depth and n < maxn:
            found = None
            for idx, item in enumerate(self.stream):
                prefs = item[3]
                if reserve_v and len(self.free['v']) <= reserve_v: prefs = [p for p in prefs if p != 'v']
                sl = self.alloc(prefs)
                if sl: found = idx; break
            if found is None: break
            self.issue(self.stream.pop(found), sl); n += 1
        return n
    def paced(self, ntiles, depth=None, step=4):
        depth = self.o.depth if depth is None else depth
        done = 0
        while done < ntiles and self.stream:
            while self.inflight() > depth - step:
                tg = next(t for t in self.a.vmq if isinstance(t, tuple) and t[0] == 'tile')
                k = [t for t in self.a.vmq if isinstance(t, tuple) and t[0] == 'tile']
                self.a.wait_vm(k[self.inflight() - (depth - step) - 1])
            n = self.pump(depth, min(step, ntiles - done), reserve_v=self.reserve_v)
            if n == 0: break
            done += n
        return done
    def need(self, tile):
        if tile not in self.loc:
            idx = next(i for i, it in enumerate(self.stream) if it[:3] == tile)
            sl = self.alloc(self.stream[idx][3])
            assert sl, f'no slot for {tile}'
            self.log.append(f'WARNING forced late issue of {tile}')
            self.issue(self.stream.pop(idx), sl)
        self.a.wait_vm(('tile', tile))
        return self.loc[tile]
    def stamp(self, name):
        self.log.append(f'   [{name}] pending stream {len(self.stream)} inflight {self.inflight()} free v/a/l {len(self.free["v"])}/{len(self.free["a"])}/{len(self.free["l"])}')
        if not self.o.stamps: return
        a = self.a
        assert sSTAMP + self.nstamp <= 101, 'too many stamps'
        a.I(f's_memrealtime s[{sPTR}:{sPTR+1}]'); a.wait_lg0()
        a.I(f's_mov_b32 s{sSTAMP + self.nstamp}, s{sPTR}')
        self.log.append(f'stamp {self.nstamp}: {name}')
        self.nstamp += 1

    def wq_issue(self, mat):
        a = self.a; sl = [self.alloc('v') for _ in range(4)]; assert all(sl), 'no v slots for wq'
        self.wslots['WQ'] = sl
        a.I(f'v_lshrrev_b32 {vT}, 4, {vLANE}'); a.I(f'v_lshlrev_b32 {vT}, 16, {vT}')
        a.I(f'v_and_b32 v{TM}, 15, {vLANE}'); a.I(f'v_lshl_add_u32 {vT}, v{TM}, 2, {vT}')
        for ks in range(2):
            for j in range(8):
                a.I(f's_add_u32 {sT0}, {sWQOFF}, {(32*ks + j) * 8192}')
                dst = self.slotreg1(sl[2*ks + (j & 1)], j >> 1)
                a.vm(f'buffer_load_dword {dst}, {vT}, {srd("WQ"+mat)}, {sT0} offen {self.o.wpol}', 'wq')
    def wq_finish(self):
        a = self.a; sl = self.wslots['WQ']; a.wait_vm('wq')
        for ks in range(2):
            for q in range(4):
                A = self.slotreg1(sl[2*ks], q); B = self.slotreg1(sl[2*ks+1], q)
                a.I(f'v_perm_b32 {vT}, {B}, {A}, {sSELLO}')
                a.I(f'v_perm_b32 {B}, {B}, {A}, {sSELHI}')
                a.I(f'v_mov_b32 {A}, {vT}')
    def wo_issue(self, mat):
        a = self.a; sl = [self.alloc('v') for _ in range(8)]; assert all(sl), 'no v slots for wo'
        self.wslots['WO'] = sl[:4]; self.wslots['WOT'] = sl[4:]
        a.I(f'v_lshrrev_b32 {vT}, 4, {vLANE}'); a.I(f'v_lshlrev_b32 {vT}, 15, {vT}')
        a.I(f'v_and_b32 v{TM}, 15, {vLANE}'); a.I(f'v_lshl_add_u32 {vT}, v{TM}, 1, {vT}')
        for ks in range(4):
            for i in range(4):
                a.I(f's_add_u32 {sT0}, {sWOOFF}, {(8*i + 2*ks) * 1024}')
                a.vm(f'buffer_load_ushort {self.slotreg1(sl[ks], i)}, {vT}, {srd("WO"+mat)}, {sT0} offen {self.o.wpol}', 'wo')
                a.vm(f'buffer_load_ushort {self.slotreg1(sl[4+ks], i)}, {vT}, {srd("WO"+mat)}, {sT0} offen offset:1024 {self.o.wpol}', 'wo')
    def wo_finish(self):
        a = self.a; a.wait_vm('wo')
        for ks in range(4):
            for i in range(4):
                d = self.slotreg1(self.wslots['WO'][ks], i); t = self.slotreg1(self.wslots['WOT'][ks], i)
                a.I(f'v_lshl_or_b32 {d}, {t}, 16, {d}')
        for k, i in self.wslots.pop('WOT'): self.free[k].append(i)
    def wfree(self, name):
        for k, i in self.wslots.pop(name): self.free[k].append(i)

    def gather(self, loads, regs, name):
        a = self.a
        for ld in loads:
            if ld.startswith('s_'): a.I(ld)
            else: a.vm(ld, 'g')
        Lr = a.newlabel('L_retry'); Lok = a.newlabel('L_ok')
        a.I(f's_mov_b32 {sRETRY}, 0')
        a.label(Lr)
        a.wait_vm0()
        rs = list(regs)
        a.I(f'v_max_u32 {vT}, v{rs[0]}, v{rs[1]}'); rs = rs[2:]
        while len(rs) >= 2:
            a.I(f'v_max3_u32 {vT}, v{rs[0]}, v{rs[1]}, {vT}'); rs = rs[2:]
        if rs: a.I(f'v_max_u32 {vT}, v{rs[0]}, {vT}')
        a.I(f'v_cmp_eq_u32 vcc, -1, {vT}')
        a.I('s_nop 0')
        a.I(f's_cbranch_vccz {Lok}')
        a.I('s_mov_b64 exec, vcc')
        for ld in loads: a.I(ld)
        a.I('s_mov_b64 exec, -1')
        a.I(f's_add_u32 {sRETRY}, {sRETRY}, 1')
        a.I(f's_cmp_lt_u32 {sRETRY}, {self.o.maxretry}')
        a.I(f's_cbranch_scc1 {Lr}')
        a.I('s_branch L_abort')
        a.label(Lok)

    def prologue(self):
        a = self.a
        a.I('s_cmp_ge_u32 s2, 256'); a.I('s_cbranch_scc1 L_end')
        a.I('s_load_dwordx4 s[8:11], s[0:1], 8')
        a.I('s_load_dwordx4 s[16:19], s[0:1], 48')
        a.I('s_load_dwordx4 s[28:31], s[0:1], 24')
        a.I('s_load_dwordx4 s[36:39], s[0:1], 64')
        a.I('s_load_dwordx2 s[24:25], s[0:1], 96')
        a.I('s_load_dwordx2 s[44:45], s[0:1], 0')
        a.I(f'v_lshrrev_b32 v1, 6, v0'); a.I(f'v_and_b32 {vLANE}, 63, v0')
        a.I(f'v_readfirstlane_b32 {sW}, v1')
        a.I(f's_and_b32 {sHKV}, s2, 7'); a.I(f's_lshr_b32 {sIDX}, s2, 3')
        a.I(f's_lshr_b32 {sB}, {sIDX}, 2'); a.I(f's_and_b32 {sS}, {sIDX}, 3')
        for c in range(16): a.I(f's_mov_b32 s{sCH+c}, {c*16384}')
        a.I(f'v_lshlrev_b32 {vV}, 4, {vLANE}')
        a.I(f'v_bfe_u32 {vK}, {vLANE}, 2, 2'); a.I(f'v_lshlrev_b32 {vK}, 8, {vK}')
        a.I(f'v_lshrrev_b32 {vT}, 4, {vLANE}'); a.I(f'v_lshl_add_u32 {vK}, {vT}, 6, {vK}')
        a.I(f'v_and_b32 {vT}, 3, {vLANE}'); a.I(f'v_lshl_add_u32 {vK}, {vT}, 4, {vK}')
        a.I(f's_mul_i32 {sLDSW}, {sW}, {NL*1024}'); a.I(f's_add_u32 {sLDSW}, {sLDSW}, {L_SLOT}')
        a.I(f'v_add_u32 {vL}, {sLDSW}, {vV}')
        a.I(f's_sub_u32 {sLDSW}, {sLDSW}, 4096')
        a.I(f's_lshl_b32 {sT0}, {sB}, 3'); a.I(f's_add_u32 {sT0}, {sT0}, {sHKV}'); a.I(f's_lshl_b32 {sT0}, {sT0}, 20')
        a.I(f's_lshl_b32 {sT1}, {sS}, 18'); a.I(f's_add_u32 {sT0}, {sT0}, {sT1}')
        a.I(f's_lshl_b32 {sT1}, {sW}, 12'); a.I(f's_add_u32 {sT0}, {sT0}, {sT1}')
        a.I('s_waitcnt lgkmcnt(0)')
        for k, vv in ((8, 12), (16, 20)):
            a.I(f's_add_u32 s{vv}, s{k+2}, {sT0}'); a.I(f's_addc_u32 s{vv+1}, s{k+3}, 0')
            a.I(f's_add_u32 s{k}, s{k}, {sT0}'); a.I(f's_addc_u32 s{k+1}, s{k+1}, 0')
            for d in (k, vv):
                a.I(f's_mov_b32 s{d+2}, 0x3d000'); a.I(f's_mov_b32 s{d+3}, 0x20000')
        for q, o_ in ((28, 32), (36, 40)):
            a.I(f's_mov_b32 s{o_}, s{q+2}'); a.I(f's_mov_b32 s{o_+1}, s{q+3}')
            for d in (q, o_):
                a.I(f's_mov_b32 s{d+2}, 0x400000'); a.I(f's_mov_b32 s{d+3}, 0x20000')
        a.I(f's_mov_b32 s26, {WS_SIZE}'); a.I('s_mov_b32 s27, 0x20000')
        a.I('s_mov_b32 s46, 8192'); a.I('s_mov_b32 s47, 0x20000')
        a.I(f's_mov_b32 {sSELLO}, 0x05040100'); a.I(f's_mov_b32 {sSELHI}, 0x07060302')
        a.I(f's_mov_b32 {sSCALE}, {f32(SCALE)}')
        a.I(f's_lshl_b32 {sWQOFF}, {sB}, 19')
        a.I(f's_lshl_b32 {sT0}, {sHKV}, 10'); a.I(f's_add_u32 {sWQOFF}, {sWQOFF}, {sT0}')
        a.I(f's_lshl_b32 {sT0}, {sS}, 8'); a.I(f's_add_u32 {sWQOFF}, {sWQOFF}, {sT0}')
        a.I(f's_lshl_b32 {sT0}, {sW}, 6'); a.I(f's_add_u32 {sWQOFF}, {sWQOFF}, {sT0}')
        a.I(f's_lshl_b32 {sWOOFF}, {sHKV}, 19'); a.I(f's_lshl_b32 {sT0}, {sW}, 17'); a.I(f's_add_u32 {sWOOFF}, {sWOOFF}, {sT0}')
        a.I(f's_lshl_b32 {sT0}, {sIDX}, 5'); a.I(f's_add_u32 {sWOOFF}, {sWOOFF}, {sT0}')
        a.I(f's_lshl_b32 {sXG}, {sHKV}, 2'); a.I(f's_add_u32 {sXG}, {sXG}, {sS}'); a.I(f's_lshl_b32 {sXG}, {sXG}, 3')
        a.I(f's_add_u32 {sXG}, {sXG}, {sB}'); a.I(f's_mul_i32 {sXG}, {sXG}, {QBLK}')
        self.stamp('start')
        a.I(f'v_lshrrev_b32 {vT}, 5, {vLANE}'); a.I(f'v_lshlrev_b32 {vT}, 10, {vT}')
        a.I(f'v_and_b32 v{TM}, 31, {vLANE}'); a.I(f'v_lshl_add_u32 {vT}, v{TM}, 2, {vT}')
        a.I(f's_lshl_b32 {sT0}, {sW}, 11'); a.I(f's_lshl_b32 {sT1}, {sB}, 7'); a.I(f's_add_u32 {sT0}, {sT0}, {sT1}')
        a.vm(f'buffer_load_dword {vXOLD}, {vT}, {srd("X")}, {sT0} offen', 'x')
        self.wq_issue('A')
        self.pump(4)
        a.I(f's_lshl_b32 {sT0}, s2, 2'); a.I(f's_add_u32 {sT0}, {sT0}, {sW}'); a.I(f's_mul_i32 {sT0}, {sT0}, {CLEAR_PER_WAVE*1024}')
        for i in range(4): a.I(f'v_mov_b32 v{O0+i}, -1')
        for i in range(CLEAR_PER_WAVE):
            if i == 4: a.I(f's_add_u32 {sT0}, {sT0}, 4096')
            a.vm(f'buffer_store_dwordx4 {v(O0,4)}, {vV}, {srd("WS")}, {sT0} offen offset:{(i%4)*1024} sc1', 'clr')
        a.I(f'v_mov_b32 v{TM}, 0')
        a.I(f'v_mov_b32 v{TM+1}, 0x3f803f80')
        a.I(f'v_cmp_gt_u32 vcc, 32, {vLANE}')
        a.I(f's_cmp_eq_u32 {sW}, 0'); a.I('s_cselect_b64 vcc, vcc, 0')
        a.I(f'v_cndmask_b32 v{TM}, v{TM}, v{TM+1}, vcc')
        self.yaddr(TM+2)
        a.ds(f'ds_write_b32 v{TM+2}, v{TM} offset:{8*144}')
        self.pump(8)
    def yaddr(self, r):
        a = self.a
        a.I(f'v_lshrrev_b32 v{r}, 5, {vLANE}'); a.I(f'v_mul_u32_u24 v{r}, 144, v{r}')
        a.I(f'v_and_b32 {vT}, 31, {vLANE}'); a.I(f'v_lshl_add_u32 v{r}, {vT}, 2, v{r}')
        a.I(f's_mul_i32 {sT3}, {sW}, 288'); a.I(f's_add_u32 {sT3}, {sT3}, {L_Y}')
        a.I(f'v_add_u32 v{r}, {sT3}, v{r}')

    def red32(self, r, t):
        a = self.a
        a.I(f'v_add_f32_dpp v{r}, v{r}, v{r} quad_perm:[1,0,3,2] row_mask:0xf bank_mask:0xf')
        a.I(f'v_add_f32_dpp v{r}, v{r}, v{r} quad_perm:[2,3,0,1] row_mask:0xf bank_mask:0xf')
        a.I(f'v_add_f32_dpp v{r}, v{r}, v{r} row_half_mirror row_mask:0xf bank_mask:0xf')
        a.I(f'v_add_f32_dpp v{r}, v{r}, v{r} row_mirror row_mask:0xf bank_mask:0xf')
        a.I(f'v_mov_b32 v{t}, v{r}')
        a.I(f'v_permlane16_swap_b32 v{r}, v{t}')
        a.I(f'v_add_f32 v{r}, v{r}, v{t}')
    def w2(self, lq):
        a = self.a; sl = self.wslots['WQ']
        YA = TM; B0 = S0; D0 = S0 + 8; AD = TM + 1; y0 = O0; y1 = O0 + 1; sm = O0 + 2; t = O0 + 3; st = O0 + 4
        self.yaddr(YA)
        a.ds(f'ds_write_b32 v{YA}, {vXOLD}')
        a.I(f'v_and_b32 v{AD}, 15, {vLANE}'); a.I(f'v_mul_u32_u24 v{AD}, 144, v{AD}')
        a.I(f'v_lshrrev_b32 {vT}, 4, {vLANE}'); a.I(f'v_lshl_add_u32 v{AD}, {vT}, 4, v{AD}')
        a.barrier()
        a.ds(f'ds_read_b128 {v(B0,4)}, v{AD} offset:{L_Y}', 'y0')
        a.ds(f'ds_read_b128 {v(B0+4,4)}, v{AD} offset:{L_Y+64}', 'y1')
        a.I(f'v_lshlrev_b32 v{y0}, 16, {vXOLD}'); a.I(f'v_and_b32 v{y1}, 0xffff0000, {vXOLD}')
        a.I(f'v_add_f32 v{sm}, v{y0}, v{y1}')
        a.I(f'v_and_b32 v{AD}, 15, {vLANE}'); a.I(f'v_cmp_gt_u32 {sM0}, 9, v{AD}'); a.I(f'v_lshlrev_b32 v{AD}, 9, v{AD}')
        a.I(f'v_lshl_add_u32 v{AD}, {vT}, 5, v{AD}')
        a.I(f's_lshl_b32 {sT0}, {sW}, 7'); a.I(f's_add_u32 {sT0}, {sT0}, {sXG}'); a.I(f's_add_u32 {sT0}, {sT0}, {MB_Q[lq]}')
        a.wait_lg('y0')
        a.I(f'v_mfma_f32_16x16x32_bf16 {v(D0,4)}, {self.slotreg(sl[0])}, {v(B0,4)}, 0')
        a.I(f'v_mfma_f32_16x16x32_bf16 {v(D0+4,4)}, {self.slotreg(sl[1])}, {v(B0,4)}, 0')
        a.wait_lg('y1')
        a.I(f'v_mfma_f32_16x16x32_bf16 {v(D0,4)}, {self.slotreg(sl[2])}, {v(B0+4,4)}, {v(D0,4)}')
        a.I(f'v_mfma_f32_16x16x32_bf16 {v(D0+4,4)}, {self.slotreg(sl[3])}, {v(B0+4,4)}, {v(D0+4,4)}')
        self.red32(sm, t)
        for i in range(8): a.I(f'v_min_u32 v{D0+i}, -2, v{D0+i}')
        a.I(f's_mov_b64 exec, {sM0}')
        a.vm(f'buffer_store_dwordx4 {v(D0,4)}, v{AD}, {srd("WS")}, {sT0} offen sc1', 'pub')
        a.vm(f'buffer_store_dwordx4 {v(D0+4,4)}, v{AD}, {srd("WS")}, {sT0} offen offset:16 sc1', 'pub')
        a.I('s_mov_b64 exec, -1')
        a.I(f'v_mul_f32 v{st}, {f32(1/64)}, v{sm}')
        a.I(f'v_sub_f32 v{y0}, v{y0}, v{st}'); a.I(f'v_sub_f32 v{y1}, v{y1}, v{st}')
        a.I(f'v_mul_f32 v{st+1}, v{y0}, v{y0}'); a.I(f'v_fmac_f32 v{st+1}, v{y1}, v{y1}')
        self.red32(st + 1, t)
        a.I(f'v_min_u32 v{st}, -2, v{st}'); a.I(f'v_min_u32 v{st+1}, -2, v{st+1}')
        a.I(f'v_lshrrev_b32 v{AD}, 5, {vLANE}'); a.I(f'v_lshlrev_b32 v{AD}, 3, v{AD}')
        a.I(f's_lshl_b32 {sT0}, {sW}, 4'); a.I(f's_add_u32 {sT0}, {sT0}, {sXG}'); a.I(f's_add_u32 {sT0}, {sT0}, {MB_Q[lq] + 4608}')
        a.I('s_mov_b32 exec_lo, 1'); a.I('s_mov_b32 exec_hi, 1')
        a.vm(f'buffer_store_dwordx2 {v(st,2)}, v{AD}, {srd("WS")}, {sT0} offen sc1', 'pub')
        a.I('s_mov_b64 exec, -1')
        self.wfree('WQ')

    def bar_arrive(self):
        a = self.a
        a.wait_vm('pub'); a.wait_vm('clr')
        a.barrier()
        L = a.newlabel('L_skip')
        a.I(f's_load_dwordx2 s[44:45], s[0:1], 88'); a.I('s_waitcnt lgkmcnt(0)'); a.I('s_mov_b32 s46, 256')
        a.I(f's_cmp_lg_u32 {sW}, 0'); a.I(f's_cbranch_scc1 {L}')
        a.I(f's_lshl_b32 {sT0}, {sHKV}, 5')
        a.I(f'v_mov_b32 v{TM}, 1'); a.I(f'v_mov_b32 v{TM+1}, 0')
        a.I('s_mov_b64 exec, 1')
        a.vm_uncounted(f'buffer_atomic_add v{TM}, v{TM+1}, {srd("X")}, {sT0} offen')
        a.I('s_mov_b64 exec, -1')
        a.label(L)
    def bar_wait(self):
        a = self.a
        L = a.newlabel('L_skip'); Lr = a.newlabel('L_retry')
        a.I(f's_cmp_lg_u32 {sW}, 0'); a.I(f's_cbranch_scc1 {L}')
        a.I(f'v_and_b32 v{TM+1}, 7, {vLANE}'); a.I(f'v_lshlrev_b32 v{TM+1}, 5, v{TM+1}')
        a.I(f's_mov_b32 {sRETRY}, 0')
        a.label(Lr)
        a.vm_uncounted(f'buffer_load_dword v{TM}, v{TM+1}, {srd("X")}, 0 offen sc1')
        a.I('s_waitcnt vmcnt(0)')
        a.I(f'v_cmp_ne_u32 vcc, 32, v{TM}'); a.I('s_nop 0')
        a.I(f's_cbranch_vccz {L}')
        a.I('s_sleep 2')
        a.I(f's_add_u32 {sRETRY}, {sRETRY}, 1'); a.I(f's_cmp_lt_u32 {sRETRY}, {self.o.maxretry}'); a.I(f's_cbranch_scc1 {Lr}')
        a.I('s_branch L_abort')
        a.label(L)
        a.barrier()

    def qstage(self, l):
        a = self.a
        cs = CS + 2 * (l & 1)
        G = O0; C = O0 + 16; ST = S0; AD = TM; AS = TM + 1
        a.I(f'v_lshlrev_b32 v{AD}, 3, {vLANE}')
        a.I(f'v_and_b32 v{AS}, 7, {vLANE}'); a.I(f'v_mul_u32_u24 v{AS}, {QBLK}, v{AS}')
        a.I(f's_lshl_b32 {sT1}, {sHKV}, 2'); a.I(f's_add_u32 {sT1}, {sT1}, {sW}'); a.I(f's_mul_i32 {sT1}, {sT1}, {8*QBLK}')
        a.I(f's_add_u32 {sT1}, {sT1}, {MB_Q[l]}')
        a.I(f's_lshl_b32 {sT2}, {sB}, 9'); a.I(f's_add_u32 {sT2}, {sT2}, {sT1}')
        a.I(f's_lshl_b32 {sT3}, {sB}, 3'); a.I(f's_add_u32 {sT3}, {sT3}, {sT1}'); a.I(f's_add_u32 {sT3}, {sT3}, 4608')
        loads = []; regs = []
        for x in range(8):
            loads.append(f's_add_u32 {sT0}, {sT2}, {x*QBLK}')
            loads.append(f'buffer_load_dwordx2 {v(G+2*x,2)}, v{AD}, {srd("WS")}, {sT0} offen sc1'); regs += [G+2*x, G+2*x+1]
        loads.append(f'buffer_load_dwordx2 {v(ST,2)}, v{AS}, {srd("WS")}, {sT3} offen sc1'); regs += [ST, ST+1]
        if l < 2:
            for x in range(8):
                loads.append(f's_add_u32 {sT0}, {sT1}, {x*QBLK + 4096}')
                loads.append(f'buffer_load_dwordx2 {v(C+2*x,2)}, v{AD}, {srd("WS")}, {sT0} offen sc1'); regs += [C+2*x, C+2*x+1]
        QAD = TM + 2; RA = TM + 3
        a.I(f'v_lshrrev_b32 v{QAD}, 2, {vLANE}'); a.I(f'v_lshlrev_b32 v{QAD}, 4, v{QAD}')
        a.I(f'v_and_b32 {vT}, 1, {vLANE}'); a.I(f'v_lshl_add_u32 v{QAD}, {vT}, 3, v{QAD}')
        a.I(f'v_and_b32 {vT}, 2, {vLANE}'); a.I(f'v_add_u32 v{QAD}, {vT}, v{QAD}')
        a.I(f's_lshl_b32 {sT0}, {sW}, 8'); a.I(f's_add_u32 {sT0}, {sT0}, {L_Q}'); a.I(f'v_add_u32 v{QAD}, {sT0}, v{QAD}')
        a.I(f'v_and_b32 v{RA}, 3, {vLANE}'); a.I(f'v_lshlrev_b32 v{RA}, 8, v{RA}')
        a.I(f'v_lshrrev_b32 {vT}, 2, {vLANE}'); a.I(f'v_lshl_add_u32 v{RA}, {vT}, 4, v{RA}')
        self.gather(loads, regs, f'q{l}')
        m = ST + 2; d = ST + 3
        def red8(r):
            a.I(f'v_add_f32_dpp v{r}, v{r}, v{r} quad_perm:[1,0,3,2] row_mask:0xf bank_mask:0xf')
            a.I(f'v_add_f32_dpp v{r}, v{r}, v{r} quad_perm:[2,3,0,1] row_mask:0xf bank_mask:0xf')
            a.I(f'v_add_f32_dpp v{r}, v{r}, v{r} row_half_mirror row_mask:0xf bank_mask:0xf')
        a.I(f'v_mul_f32 v{m}, 0.125, v{ST}'.replace('0.125', f32(0.125)))
        def tree(base):
            for st_ in (4, 2, 1):
                for x in range(st_):
                    a.I(f'v_pk_add_f32 {v(base+2*x,2)}, {v(base+2*x,2)}, {v(base+2*(x+st_),2)}')
        red8(m)
        tree(G)
        a.I(f'v_sub_f32 v{d}, v{ST}, v{m}'); a.I(f'v_mul_f32 v{d}, v{d}, v{d}')
        a.I(f'v_mul_f32 v{d}, {f32(64.0)}, v{d}'); a.I(f'v_add_f32 v{d}, v{d}, v{ST+1}')
        if l < 2:
            tree(C); a.I(f'v_mov_b32 v{cs}, v{C}'); a.I(f'v_mov_b32 v{cs+1}, v{C+1}')
        red8(d)
        a.I(f'v_mov_b32 {vT}, {f32(1e-5)}')
        a.I(f'v_fmac_f32 {vT}, {f32(1/512)}, v{d}')
        a.I(f'v_rsq_f32 {vT}, {vT}')
        a.I(f'v_fma_f32 v{G}, -v{m}, v{cs}, v{G}'); a.I(f'v_fma_f32 v{G+1}, -v{m}, v{cs+1}, v{G+1}')
        a.I(f'v_mul_f32 v{G}, v{G}, {vT}'); a.I(f'v_mul_f32 v{G+1}, v{G+1}, {vT}')
        a.I(f'v_cvt_pk_bf16_f32 v{G}, v{G}, v{G+1}')
        a.ds(f'ds_write_b16 v{QAD}, v{G}'); a.ds(f'ds_write_b16_d16_hi v{QAD}, v{G} offset:4')
        a.barrier()
        a.ds(f'ds_read_b128 {v(QA,4)}, v{RA} offset:{L_Q}', 'q')
        a.wait_lg('q')

    def qk(self, mat, order, keep):
        a = self.a
        pend = []
        staged = {}
        nst = 0
        order = list(order)
        def prefetch_lds(pos):
            nonlocal nst
            if pos < len(order):
                t = order[pos]; tile = (mat, 'K', t)
                if tile in self.loc and self.loc[tile][0] == 'l' and t not in staged and ('tile', tile) not in a.vmq:
                    r = O0 + 20 + 4 * (nst % 3); nst += 1
                    a.ds(f'ds_read_b128 {v(r,4)}, {vL} offset:{self.loc[tile][1]*1024}', ('k', t)); staged[t] = r
        def extract(t, D):
            e = t & 7; i = e >> 1; dense = S0 + 2 * (t >> 3) + (e & 1); u = O0 + 16 + 2 * (t & 1); w_ = u + 1
            a.I(f'v_add_f32_dpp v{u}, v{D+((i+1)&3)}, v{D+i} row_ror:12 row_mask:0xf bank_mask:0xf')
            a.I(f'v_add_f32_dpp v{w_}, v{D+((i+3)&3)}, v{D+((i+2)&3)} row_ror:12 row_mask:0xf bank_mask:0xf')
            return (dense, u, w_, i)
        def extract2(x):
            dense, u, w_, i = x
            a.I(f'v_add_f32_dpp v{dense}, v{w_}, v{u} row_ror:8 row_mask:0xf bank_mask:{1<<i:#x}')
        fin = None
        for pos, t in enumerate(order):
            tile = (mat, 'K', t)
            sl = self.need(tile)
            D = O0 + 4 * (pos % 4)
            if sl[0] == 'l':
                prefetch_lds(pos)
                a.wait_lg(('k', t)); src = v(staged[t], 4)
            else: src = self.slotreg(sl)
            a.I(f'v_mfma_f32_16x16x32_bf16 {v(D,4)}, {src}, {v(QA,4)}, 0')
            prefetch_lds(pos + 1); prefetch_lds(pos + 2)
            if tile not in keep: self.release(tile)
            self.pump(reserve_v=self.reserve_v)
            pend.append((t, D))
            if fin: extract2(fin); fin = None
            if len(pend) > 2: fin = extract(*pend.pop(0))
        while pend:
            if fin: extract2(fin)
            fin = extract(*pend.pop(0))
        extract2(fin)
    def red_all(self, op, r, t):
        a = self.a
        a.I(f'{op}_dpp v{r}, v{r}, v{r} row_ror:4 row_mask:0xf bank_mask:0xf')
        a.I(f'{op}_dpp v{r}, v{r}, v{r} row_ror:8 row_mask:0xf bank_mask:0xf')
        a.I(f'v_mov_b32 v{t}, v{r}'); a.I(f'v_permlane16_swap_b32 v{r}, v{t}'); a.I(f'{op} v{r}, v{r}, v{t}')
        a.I(f'v_mov_b32 v{t}, v{r}'); a.I(f'v_permlane32_swap_b32 v{r}, v{t}'); a.I(f'{op} v{r}, v{r}, v{t}')
    def softmax(self, l):
        a = self.a
        m = O0; t = O0 + 1; AD = O0 + 2; RD = O0 + 3; X = O0 + 4; L = O0 + 8
        a.I(f'v_max3_f32 v{m}, v{S0}, v{S0+1}, v{S0+2}')
        for i in range(3, 15, 2): a.I(f'v_max3_f32 v{m}, v{S0+i}, v{S0+i+1}, v{m}')
        a.I(f'v_max_f32 v{m}, v{S0+15}, v{m}')
        a.I(f'v_and_b32 v{RD}, 3, {vLANE}'); a.I(f'v_lshlrev_b32 v{RD}, 4, v{RD}')
        a.I(f's_lshl_b32 {sT0}, {sW}, 2'); a.I(f'v_add_u32 v{AD}, {sT0}, v{RD}')
        self.red_all('v_max_f32', m, t)
        a.ds(f'ds_write_b32 v{AD}, v{m} offset:{L_MX}')
        a.barrier()
        a.ds(f'ds_read_b128 {v(X,4)}, v{RD} offset:{L_MX}', 'mx'); a.wait_lg('mx')
        a.I(f'v_max3_f32 v{m}, v{X}, v{X+1}, v{X+2}'); a.I(f'v_max_f32 v{m}, v{m}, v{X+3}')
        a.I(f'v_mul_f32 {vNM}, {sSCALE}, v{m}')
        for i in range(16):
            a.I(f'v_fma_f32 v{S0+i}, v{S0+i}, {sSCALE}, -{vNM}')
        for i in range(16):
            a.I(f'v_exp_f32 v{S0+i}, v{S0+i}')
        a.I(f'v_add_f32 v{L}, v{S0}, v{S0+1}')
        for i in range(2, 16): a.I(f'v_add_f32 v{L}, v{L}, v{S0+i}')
        for bta in range(8):
            a.I(f'v_cvt_pk_bf16_f32 v{S0+bta}, v{S0+2*bta}, v{S0+2*bta+1}')
        self.red_all('v_add_f32', L, t)
        a.ds(f'ds_write_b32 v{AD}, v{L} offset:{L_MX+64}')
        a.barrier()
        a.ds(f'ds_read_b128 {v(X,4)}, v{RD} offset:{L_MX+64}', 'ls'); a.wait_lg('ls')
        a.I(f'v_add_f32 v{X}, v{X}, v{X+1}'); a.I(f'v_add_f32 v{X+2}, v{X+2}, v{X+3}'); a.I(f'v_add_f32 v{L+1}, v{X}, v{X+2}')
        a.I(f'v_rcp_f32 {vRL}, v{L+1}')
        a.I(f'v_min_u32 v{L}, -2, {vNM}'); a.I(f'v_min_u32 v{L+1}, -2, v{L+1}')
        a.I(f'v_lshlrev_b32 v{AD}, 8, {vLANE}')
        a.I(f's_lshl_b32 {sT0}, {sHKV}, 10'); a.I(f's_lshl_b32 {sT1}, {sIDX}, 3'); a.I(f's_add_u32 {sT0}, {sT0}, {sT1}')
        a.I(f's_add_u32 {sT0}, {sT0}, {MB_OS + l*8192}')
        Ls = a.newlabel('L_skip')
        a.I(f's_cmp_lg_u32 {sW}, 0'); a.I(f's_cbranch_scc1 {Ls}')
        a.I('s_mov_b64 exec, 15')
        a.vm_uncounted(f'buffer_store_dwordx2 {v(L,2)}, v{AD}, {srd("WS")}, {sT0} offen sc1')
        a.I('s_mov_b64 exec, -1')
        a.label(Ls)
    def pv(self, mat, blocks, keep, hooks=None):
        a = self.a; hooks = hooks or {}
        Ta, Tb = S0 + 8, S0 + 12
        first = True; pendm = None
        for bi, bta in enumerate(blocks):
            if bi in hooks: hooks[bi]()
            tiles = [(mat, 'V', 8 * bta + e) for e in range(8)]
            for tl in tiles: self.need(tl)
            sls = [self.loc[tl] for tl in tiles]
            if pendm: a.I(pendm); pendm = None
            a.I(f'v_mov_b32 v{QA}, v{S0+bta}')
            for r in range(1, 4):
                a.I(f'v_mov_b32_dpp v{QA+r}, v{S0+bta} row_shl:{4*r} row_mask:0xf bank_mask:0xf bound_ctrl:0')
            for r in range(4):
                src = []
                for e in range(8):
                    if sls[e][0] == 'a':
                        a.I(f'v_accvgpr_read_b32 v{TM+e}, {self.slotreg1(sls[e], r)}'); src.append(f'v{TM+e}')
                    else: src.append(self.slotreg1(sls[e], r))
                for par, T, sel in ((0, Ta, sSELLO), (1, Tb, sSELHI)):
                    for q in range(4):
                        a.I(f'v_perm_b32 v{T+q}, {src[2*q+1]}, {src[2*q]}, {sel}')
                    if pendm: a.I(pendm)
                    j = 2 * r + par; Oj = v(O0 + 4 * j, 4)
                    pendm = f'v_mfma_f32_16x16x32_bf16 {Oj}, {v(QA,4)}, {v(T,4)}, {"0" if first else Oj}'
            first = False
            for tl in tiles:
                if tl not in keep: self.release(tl)
            self.pump(reserve_v=self.reserve_v)
        a.I(pendm)
    def epilogue(self, l):
        a = self.a
        AD = TM; RD = TM + 1; SA = TM + 2; X = S0
        a.I(f's_lshl_b32 {sT0}, {sW}, 11'); a.I(f's_add_u32 {sT0}, {sT0}, {L_OC}'); a.I(f'v_add_u32 v{AD}, {sT0}, {vV}')
        a.I(f's_lshl_b32 {sT0}, {sW}, 9'); a.I(f's_add_u32 {sT0}, {sT0}, {L_OC}')
        a.I(f'v_lshlrev_b32 v{RD}, 2, {vLANE}'); a.I(f'v_add_u32 v{RD}, {sT0}, v{RD}')
        a.I(f'v_and_b32 v{SA}, 3, {vLANE}'); a.I(f'v_lshlrev_b32 v{SA}, 8, v{SA}')
        a.I(f'v_and_b32 {vT}, 48, {vLANE}'); a.I(f'v_add_u32 v{SA}, {vT}, v{SA}')
        a.I(f's_lshl_b32 {sT0}, {sHKV}, 15'); a.I(f's_lshl_b32 {sT1}, {sS}, 13'); a.I(f's_add_u32 {sT0}, {sT0}, {sT1}')
        a.I(f's_lshl_b32 {sT1}, {sB}, 10'); a.I(f's_add_u32 {sT0}, {sT0}, {sT1}')
        a.I(f's_lshl_b32 {sT1}, {sW}, 6'); a.I(f's_add_u32 {sT0}, {sT0}, {sT1}'); a.I(f's_add_u32 {sT0}, {sT0}, {MB_O + l*0x40000}')
        a.I('s_mov_b64 exec, 0xffff')
        for j in range(8): a.ds(f'ds_write_b128 v{AD}, {v(O0+4*j,4)} offset:{j*256}')
        a.I('s_mov_b64 exec, -1')
        a.barrier()
        for w_ in range(4): a.ds(f'ds_read2st64_b32 {v(X+2*w_,2)}, v{RD} offset0:{8*w_} offset1:{8*w_+1}', ('oc', w_))
        a.wait_lg(('oc', 1)); a.I(f'v_pk_add_f32 {v(X,2)}, {v(X,2)}, {v(X+2,2)}')
        a.wait_lg(('oc', 3)); a.I(f'v_pk_add_f32 {v(X+4,2)}, {v(X+4,2)}, {v(X+6,2)}')
        a.I(f'v_pk_add_f32 {v(X,2)}, {v(X,2)}, {v(X+4,2)}')
        a.I(f'v_mul_f32 v{X}, v{X}, {vRL}'); a.I(f'v_mul_f32 v{X+1}, v{X+1}, {vRL}')
        a.I(f'v_cvt_pk_bf16_f32 v{QA}, v{X}, v{X+1}'); a.I(f'v_min_u32 v{QA}, -2, v{QA}')
        for r in range(1, 4):
            a.I(f'v_mov_b32_dpp v{QA+r}, v{QA} row_shl:{4*r} row_mask:0xf bank_mask:0xf bound_ctrl:0')
        a.I('s_mov_b32 exec_lo, 0x000f000f'); a.I('s_mov_b32 exec_hi, 0x000f000f')
        a.vm(f'buffer_store_dwordx4 {v(QA,4)}, v{SA}, {srd("WS")}, {sT0} offen sc1', 'pub')
        a.I('s_mov_b64 exec, -1')

    def w1(self, l):
        a = self.a; sl = self.wslots['WO']
        G = O0; ST = S0; D = S0 + 8; AD = TM; AS = TM + 1; SA = TM + 2
        a.I(f'v_and_b32 v{AD}, 15, {vLANE}'); a.I(f'v_lshlrev_b32 v{AD}, 10, v{AD}')
        a.I(f'v_and_b32 {vT}, 48, {vLANE}'); a.I(f'v_add_u32 v{AD}, {vT}, v{AD}')
        a.I(f'v_and_b32 v{AS}, 7, {vLANE}'); a.I(f'v_lshlrev_b32 v{SA}, 8, v{AS}'); a.I(f'v_lshlrev_b32 v{AS}, 5, v{AS}')
        a.I(f'v_add_u32 v{SA}, {vT}, v{SA}')
        a.I(f's_lshl_b32 {sT0}, {sHKV}, 15'); a.I(f's_lshl_b32 {sT1}, {sW}, 8'); a.I(f's_add_u32 {sT0}, {sT0}, {sT1}')
        a.I(f's_add_u32 {sT0}, {sT0}, {MB_O + l*0x40000}'); a.I(f's_add_u32 {sT2}, {sT0}, 16384')
        a.I(f's_lshl_b32 {sT3}, {sHKV}, 10'); a.I(f's_add_u32 {sT3}, {sT3}, {sT1}'); a.I(f's_add_u32 {sT3}, {sT3}, {MB_OS + l*8192}')
        loads = []; regs = []
        loads.append(f'buffer_load_dwordx4 {v(ST,4)}, v{AS}, {srd("WS")}, {sT3} offen sc1')
        loads.append(f'buffer_load_dwordx4 {v(ST+4,4)}, v{AS}, {srd("WS")}, {sT3} offen offset:16 sc1'); regs += list(range(ST, ST+8))
        for sp in range(2):
            for ks in range(4):
                r = G + 16*sp + 4*ks
                loads.append(f'buffer_load_dwordx4 {v(r,4)}, v{AD}, {srd("WS")}, {sT2 if sp else sT0} offen offset:{ks*64} sc1'); regs += list(range(r, r+4))
        a.I(f'v_and_b32 {vT}, 8, {vLANE}'); a.I(f'v_cmp_ne_u32 {sM1}, 0, {vT}')
        self.gather(loads, regs, f'o{l}')
        for ks in range(4):
            for sp in range(2):
                Dd = v(D + 4*sp, 4)
                a.I(f'v_mfma_f32_16x16x32_bf16 {Dd}, {self.slotreg(sl[ks])}, {v(G+16*sp+4*ks,4)}, {"0" if ks == 0 else Dd}')
        M = TM + 3; E = TM + 4
        a.I(f'v_max3_f32 v{M}, v{ST}, v{ST+2}, v{ST+4}'); a.I(f'v_max_f32 v{M}, v{M}, v{ST+6}')
        for s in range(4): a.I(f'v_sub_f32 v{E+s}, v{ST+2*s}, v{M}')
        for s in range(4): a.I(f'v_exp_f32 v{E+s}, v{E+s}')
        for s in range(4): a.I(f'v_mul_f32 v{E+s}, v{E+s}, v{ST+2*s+1}')
        a.I(f'v_add_f32 v{M}, v{E}, v{E+1}'); a.I(f'v_add_f32 {vT}, v{E+2}, v{E+3}'); a.I(f'v_add_f32 v{M}, v{M}, {vT}')
        a.I(f'v_rcp_f32 v{M}, v{M}')
        a.I(f'v_cndmask_b32 v{E}, v{E}, v{E+1}, {sM1}'); a.I(f'v_cndmask_b32 v{E+2}, v{E+2}, v{E+3}, {sM1}')
        a.I(f'v_mul_f32 v{E}, v{E}, v{M}'); a.I(f'v_mul_f32 v{E+2}, v{E+2}, v{M}')
        for r in range(4): a.I(f'v_mul_f32 v{D+r}, v{D+r}, v{E}')
        for r in range(4): a.I(f'v_fmac_f32 v{D+r}, v{D+4+r}, v{E+2}')
        for r in range(4): a.I(f'v_add_f32_dpp v{D+r}, v{D+r}, v{D+r} row_ror:8 row_mask:0xf bank_mask:0xf')
        a.I(f's_lshl_b32 {sT0}, {sW}, 10'); a.I(f'v_add_u32 v{AD}, {sT0}, {vV}')
        a.ds(f'ds_write_b128 v{AD}, {v(D,4)} offset:{L_W1}')
        a.I(f's_lshl_b32 {sT0}, {sB}, 14'); a.I(f's_lshl_b32 {sT1}, {sHKV}, 11'); a.I(f's_add_u32 {sT0}, {sT0}, {sT1}')
        a.I(f's_lshl_b32 {sT1}, {sS}, 6'); a.I(f's_add_u32 {sT0}, {sT0}, {sT1}'); a.I(f's_add_u32 {sT0}, {sT0}, {MB_Y + l*0x20000}')
        a.barrier()
        Ls = a.newlabel('L_skip')
        a.I(f's_cmp_lg_u32 {sW}, 0'); a.I(f's_cbranch_scc1 {Ls}')
        for w_ in range(1, 4): a.I(f'ds_read_b128 {v(G+4*w_,4)}, {vV} offset:{L_W1 + 1024*w_}')
        a.I('s_waitcnt lgkmcnt(0)')
        for h in range(2):
            a.I(f'v_pk_add_f32 {v(D+2*h,2)}, {v(D+2*h,2)}, {v(G+4+2*h,2)}'); a.I(f'v_pk_add_f32 {v(G+8+2*h,2)}, {v(G+8+2*h,2)}, {v(G+12+2*h,2)}')
        for h in range(2): a.I(f'v_pk_add_f32 {v(D+2*h,2)}, {v(D+2*h,2)}, {v(G+8+2*h,2)}')
        for r in range(4): a.I(f'v_min_u32 v{D+r}, -2, v{D+r}')
        a.I('s_mov_b32 exec_lo, 0x00ff00ff'); a.I('s_mov_b32 exec_hi, 0x00ff00ff')
        a.vm_uncounted(f'buffer_store_dwordx4 {v(D,4)}, v{SA}, {srd("WS")}, {sT0} offen sc1')
        a.I('s_mov_b64 exec, -1'); a.I('s_nop 1')
        a.label(Ls)
        self.wfree('WO')
    def ystage(self, l):
        a = self.a
        G = O0; AD = TM + 2
        a.I(f'v_lshlrev_b32 v{AD}, 3, {vLANE}')
        a.I(f's_lshl_b32 {sT1}, {sB}, 14'); a.I(f's_lshl_b32 {sT2}, {sW}, 9'); a.I(f's_add_u32 {sT1}, {sT1}, {sT2}')
        a.I(f's_add_u32 {sT1}, {sT1}, {MB_Y + l*0x20000}')
        loads = []; regs = []
        for hp in range(4):
            loads.append(f's_add_u32 {sT0}, {sT1}, {hp*4096}')
            for k in range(2):
                r = G + 4*hp + 2*k
                loads.append(f'buffer_load_dwordx2 {v(r,2)}, v{AD}, {srd("WS")}, {sT0} offen offset:{k*2048} sc1'); regs += [r, r+1]
        self.gather(loads, regs, f'y{l}')
        for st_ in (4, 2, 1):
            for x in range(st_):
                a.I(f'v_pk_add_f32 {v(G+2*x,2)}, {v(G+2*x,2)}, {v(G+2*(x+st_),2)}')
        a.I(f'v_cvt_pk_bf16_f32 v{G}, v{G}, v{G+1}')
        a.I(f'v_lshlrev_b32 v{G+2}, 16, v{G}'); a.I(f'v_and_b32 v{G+3}, 0xffff0000, v{G}')
        a.I(f'v_lshlrev_b32 v{G+4}, 16, {vXOLD}'); a.I(f'v_and_b32 v{G+5}, 0xffff0000, {vXOLD}')
        a.I(f'v_pk_add_f32 {v(G+2,2)}, {v(G+2,2)}, {v(G+4,2)}')
        a.I(f'v_cvt_pk_bf16_f32 {vXOLD}, v{G+2}, v{G+3}')
    def final_store(self):
        a = self.a
        a.I(f's_load_dwordx2 s[44:45], s[0:1], 80'); a.I('s_mov_b32 s46, 8192')
        a.I(f'v_lshrrev_b32 {vT}, 5, {vLANE}'); a.I(f'v_lshlrev_b32 {vT}, 10, {vT}')
        a.I(f'v_and_b32 v{TM}, 31, {vLANE}'); a.I(f'v_lshl_add_u32 v{TM}, v{TM}, 2, {vT}')
        a.I(f's_lshl_b32 {sT3}, {sW}, 11'); a.I(f's_lshl_b32 {sT1}, {sB}, 7'); a.I(f's_add_u32 {sXG}, {sT3}, {sT1}')
        a.I('s_waitcnt lgkmcnt(0)')
        self.ystage(3)
        a.vm(f'buffer_store_dword {vXOLD}, v{TM}, {srd("X")}, {sXG} offen', 'out')

    def build(self):
        o = self.o; a = self.a
        KP = ['l', 'a', 'v']; VP = ['v', 'a']; VPA = ['a', 'v']
        akeepV = o.akeep; bkeepV = o.bkeep
        self.reserve_v = 0
        pol_once, pol_re = o.pol_once, o.pol_re
        keepA = {('A', 'K', t) for t in range(64)} | {('A', 'V', t) for t in range(64 - 8*akeepV, 64)}
        keepB = {('B', 'V', t) for t in range(64 - 8*bkeepV, 64)}
        def pol(tile, keep): return pol_once if tile in keep else pol_re
        S = self.stream
        S += [('A', 'K', t, KP, pol(('A','K',t), keepA)) for t in range(64)]
        S += [('A', 'V', t, (VP if ('A','V',t) in keepA else VPA), pol(('A','V',t), keepA)) for t in range(64)]
        S += [('B', 'K', t, ['a', 'v'], pol(('B','K',t), keepB)) for t in range(64)]
        S += [('B', 'V', t, VPA, pol(('B','V',t), keepB)) for t in range(64)]
        S2 = [('A', 'V', t, VPA, pol_once) for t in range(64 - 8*akeepV)]
        S2 += [('B', 'K', t, KP, pol_once) for t in range(64)]
        S2 += [('B', 'V', t, VP, pol_once) for t in range(64 - 8*bkeepV)]
        self.reserve_v = 12 + 8*akeepV
        self.prologue()
        a.wait_vm('x'); self.wq_finish()
        self.w2(0)
        self.pump(o.depth)
        self.bar_arrive()
        self.paced(o.pre0)
        self.pump(o.batch, reserve_v=self.reserve_v)
        self.stamp('pre-barrier')
        self.bar_wait()
        self.qstage(0)
        self.stamp('q0 ready')
        for l in range(4):
            mat = 'AB'[l & 1]; nxt = 'AB'[(l + 1) & 1]
            keep = keepA if l == 0 else (keepB if l == 1 else set())
            if l == 2: self.stream += S2; self.reserve_v = 0
            korder = list(range(64))
            if l == 2: korder.sort(key=lambda t: self.loc[('A', 'K', t)][0] != 'a')
            if l == 0: self.reserve_v = 12 + 8*akeepV
            if l == 1: self.reserve_v = 12
            self.qk(mat, korder, keep)
            self.stamp(f'qk{l} done')
            self.softmax(l)
            blocks = list(range(8)); hooks = {}
            if l < 2:
                def h_issue(mat=mat, nxt=nxt):
                    self.reserve_v = 0
                    self.wo_issue(mat); self.wq_issue(nxt)
                def h_fin(): self.wo_finish(); self.wq_finish()
                if l == 0:
                    self.reserve_v = 12
                    hooks = {1: h_issue, 3: h_fin}
                else: hooks = {0: h_issue, 2: h_fin}
            elif l == 2:
                blocks = list(range(8 - akeepV, 8)) + list(range(8 - akeepV))
                def h_issue(): self.reserve_v = 0; self.wo_issue('A'); self.wq_issue('B')
                def h_fin(): self.wo_finish(); self.wq_finish()
                self.reserve_v = 12
                hooks = {akeepV: h_issue, akeepV + 2: h_fin}
            else:
                blocks = list(range(8 - bkeepV, 8)) + list(range(8 - bkeepV))
                def h_issue(): self.reserve_v = 0; self.wo_issue('B')
                hooks = {1: h_issue, 3: self.wo_finish}
                self.reserve_v = 8
            self.pv(mat, blocks, keep, hooks)
            self.stamp(f'pv{l} done')
            self.epilogue(l)
            self.pump(o.batch)
            self.w1(l)
            self.stamp(f'w1_{l} done')
            if l == 3: break
            self.pump(o.batch)
            self.ystage(l)
            self.w2(l + 1)
            self.pump(o.batch)
            self.qstage(l + 1)
            self.stamp(f'q{l+1} ready')
        assert not self.stream, f'unissued tiles: {len(self.stream)}'
        a.I(f's_cmp_lg_u32 {sHKV}, {sB}'); a.I('s_cbranch_scc1 L_fin')
        a.I(f's_cmp_lg_u32 {sS}, 0'); a.I('s_cbranch_scc1 L_fin')
        self.final_store()
        a.label('L_fin')
        if o.stamps:
            self.stamp('end')
            a.I(f's_cmp_lg_u32 {sW}, 0'); a.I('s_cbranch_scc1 L_end')
            a.I(f's_lshl_b32 {sT0}, s2, 8'); a.I(f's_add_u32 {sT0}, {sT0}, {STAMP_OFF}')
            a.I(f'v_mov_b32 v{TM+1}, 0'); a.I(f'v_mov_b32 v{TM+3}, 0'); a.I('s_mov_b64 exec, 1')
            for i in range(self.nstamp):
                a.I(f'v_mov_b32 v{TM+2}, s{sSTAMP+i}')
                a.I(f'buffer_store_dwordx2 {v(TM+2,2)}, v{TM+1}, {srd("WS")}, {sT0} offen offset:{8*i}')
                a.I('s_waitcnt vmcnt(0)')
        a.I('s_branch L_end')
        a.label('L_abort')
        a.I('s_mov_b64 exec, -1')
        a.label('L_end')
        a.I('s_endpgm')
        hdr = open('cdna_kernels/' + NAME + '.s.ref').read().split('; Override')[0]
        out = hdr + f'; @launch grid=(256,1,1) block=(256,1,1) lds={LDS_BYTES}\n'
        out += '.amdgcn_target "amdgcn-amd-amdhsa--gfx950"\n.text\n'
        out += f'.globl {NAME}_kernel\n.p2align 8\n.type {NAME}_kernel,@function\n{NAME}_kernel:\n'
        out += a.text()
        out += f'''.section .rodata,"a"
.p2align 6
.amdhsa_kernel {NAME}_kernel
  .amdhsa_next_free_vgpr 512
  .amdhsa_next_free_sgpr 102
  .amdhsa_accum_offset 256
  .amdhsa_group_segment_fixed_size 0
  .amdhsa_kernarg_size 104
  .amdhsa_user_sgpr_count 2
  .amdhsa_user_sgpr_kernarg_segment_ptr 1
  .amdhsa_system_sgpr_workgroup_id_x 1
  .amdhsa_float_denorm_mode_32 3
.end_amdhsa_kernel
'''
        return out

def opts(argv=None):
    ap = argparse.ArgumentParser()
    ap.add_argument('-o', default='cdna_kernels/' + NAME + '.s')
    ap.add_argument('--stamps', action='store_true')
    ap.add_argument('--depth', type=int, default=12)
    ap.add_argument('--batch', type=int, default=16)
    ap.add_argument('--pre0', type=int, default=24)
    ap.add_argument('--akeep', type=int, default=3)
    ap.add_argument('--bkeep', type=int, default=6)
    ap.add_argument('--pol_once', default='nt')
    ap.add_argument('--pol_re', default='nt')
    ap.add_argument('--wpol', default='')
    ap.add_argument('--maxretry', type=int, default=20000)
    return ap.parse_args(argv)

if __name__ == '__main__':
    o = opts()
    g = Gen(o); s = g.build()
    open(o.o, 'w').write(s)
    print('\n'.join(g.log)); print('bytes', len(s), 'pads', g.a.npad, 'maxvm', g.a.maxvm, 'ins', sum(1 for i in g.a.items if not isinstance(i, str)))
```
